```python
import torch

def _softmax(x, axis=-1):
    return torch.softmax(x, dim=axis)
def _gelu(x):
    return torch.nn.functional.gelu(x, approximate="tanh")
def _silu(x):
    return torch.nn.functional.silu(x)
def _sigmoid(x):
    return torch.sigmoid(x)
def _layernorm(x, axis=-1, eps=1e-5):
    m = x.mean(dim=axis, keepdim=True)
    v = x.var(dim=axis, keepdim=True, unbiased=False)
    return (x - m) / torch.sqrt(v + eps)
def _scatter_add(tgt, idx, src, axis=0):
    return tgt.clone().index_add_(axis, idx, src)
def _segment_sum(src, seg, n):
    out = torch.zeros((n,) + src.shape[1:], dtype=src.dtype)
    return out.index_add_(0, seg, src)
def _pad(x, pw):
    flat = tuple(v for pair in reversed(pw) for v in pair)
    return torch.nn.functional.pad(x, flat)

kernel_name = 'standalone__gqa_softmax__near_ridge'

def setup_inputs():

    _w = (lambda a: (lambda t: t.to(torch.bfloat16) if t.is_floating_point() else t)(torch.as_tensor(a)))
    B, Hq, Hkv, Sq, Sk, D = 8, 32, 8, 128, 512, 128
    return {
        "q": _w((lambda *s: torch.randn(*s, dtype=torch.bfloat16) * 0.8)(B, Hq, Sq, D)),
        "k": _w((lambda *s: torch.randn(*s, dtype=torch.bfloat16) * 0.8)(B, Hkv, Sk, D)),
        "v": _w((lambda *s: torch.randn(*s, dtype=torch.bfloat16) * 0.05)(B, Hkv, Sk, D)),
    }

def reference(q, k, v):
    B, Hq, Sq, D = q.shape
    Hkv = k.shape[1]
    rep = Hq // Hkv
    k = (lambda x, n, axis: torch.repeat_interleave(x, n, dim=axis))(k, rep, axis=1)
    v = (lambda x, n, axis: torch.repeat_interleave(x, n, dim=axis))(v, rep, axis=1)
    scale = D ** -0.5
    scores = torch.einsum("bhqd,bhkd->bhqk", q, k) * scale
    p = _softmax(scores, axis=-1)
    return torch.einsum("bhqk,bhkd->bhqd", p, v)
```

```python
import re

def vr(a, n=1):
    return set(('v', a + i) for i in range(n))
def sr(a, n=1):
    return set(('s', a + i) for i in range(n))

def vt(a, n=1):
    return "v%d" % a if n == 1 else "v[%d:%d]" % (a, a + n - 1)
def st(a, n=1):
    return "s%d" % a if n == 1 else "s[%d:%d]" % (a, a + n - 1)

class I:
    __slots__ = ("t", "k", "w", "r", "d", "a", "b", "c", "ws", "cnt", "ldsdma", "store4")
    def __init__(s, t, k, w=(), r=(), **kw):
        s.t = t; s.k = k; s.w = set(w); s.r = set(r)
        s.d = kw.get('d'); s.a = kw.get('a'); s.b = kw.get('b'); s.c = kw.get('c')
        s.ws = kw.get('ws', 1); s.cnt = kw.get('cnt'); s.ldsdma = kw.get('ldsdma', False)
        s.store4 = kw.get('store4')

def label(n): return I(n + ":", 'label', ws=0)
def comment(n): return I("; " + n, 'label', ws=0)
def salu(t, w=(), r=()): return I(t, 'salu', w, r)
def nop(n): return I("s_nop %d" % n, 'salu', ws=n + 1)
def valu(t, w, r): return I(t, 'valu', w, r)
def trans(t, w, r): return I(t, 'trans', w, r)
def barrier(): return I("s_barrier", 'salu')
def wait(vm=None, lgkm=None):
    p = []
    if vm is not None: p.append("vmcnt(%d)" % vm)
    if lgkm is not None: p.append("lgkmcnt(%d)" % lgkm)
    return I("s_waitcnt " + " ".join(p), 'wait', cnt=(vm, lgkm))

def mfma(d, a, b, c):
    ct = "0" if c is None else vt(c, 16)
    return I("v_mfma_f32_32x32x16_bf16 %s, %s, %s, %s" % (vt(d, 16), vt(a, 4), vt(b, 4), ct), 'mfma',
             vr(d, 16), vr(a, 4) | vr(b, 4) | (vr(c, 16) if c is not None else set()),
             d=d, a=vr(a, 4), b=vr(b, 4), c=c)

def v_exp(d, s): return trans("v_exp_f32 v%d, v%d" % (d, s), vr(d), vr(s))
def v_rcp(d, s): return trans("v_rcp_f32 v%d, v%d" % (d, s), vr(d), vr(s))
def v_add(d, a, b): return valu("v_add_f32 v%d, v%d, v%d" % (d, a, b), vr(d), vr(a) | vr(b))
def v_cvtpk(d, a, b): return valu("v_cvt_pk_bf16_f32 v%d, v%d, v%d" % (d, a, b), vr(d), vr(a) | vr(b))
def v_mov(d, src):
    if isinstance(src, int): return valu("v_mov_b32 v%d, v%d" % (d, src), vr(d), vr(src))
    return valu("v_mov_b32 v%d, %s" % (d, src), vr(d), set())
def ds_read128(d, addr, off): return I("ds_read_b128 %s, v%d offset:%d" % (vt(d, 4), addr, off), 'dsr', vr(d, 4), vr(addr))
def ds_readtr(d, addr, off): return I("ds_read_b64_tr_b16 %s, v%d offset:%d" % (vt(d, 2), addr, off), 'dsr', vr(d, 2), vr(addr))
def swap32(a, b): return I("v_permlane32_swap_b32 v%d, v%d" % (a, b), 'perm', vr(a) | vr(b), vr(a) | vr(b))

def check(trace, name=""):
    errs = []
    n = len(trace)
    lds_q = []
    vm_q = []
    for i, c in enumerate(trace):
        if c.k == 'label': continue
        if c.k == 'wait':
            vm, lg = c.cnt
            if vm is not None:
                while len(vm_q) > vm: vm_q.pop(0)
            if lg is not None:
                while len(lds_q) > lg: lds_q.pop(0)
            continue
        touched = c.r | c.w
        for q, nm in ((lds_q, 'lds'), (vm_q, 'vm')):
            for dst in q:
                if dst & touched:
                    errs.append("%s: [%d] %s touches outstanding %s dest %s" % (name, i, c.t, nm, sorted(dst & touched)[:2]))
        if c.k in ('dsr', 'dsw', 'smem'): lds_q.append(set(c.w))
        if c.k in ('vmem',): vm_q.append(set(c.w))
        if len(lds_q) > 15 + 48: pass
        dist = 0
        j = i - 1
        while j >= 0 and dist < 20:
            p = trace[j]
            if p.k != 'label':
                need = 0
                pv = p.k in ('valu', 'trans', 'perm')
                cv = c.k in ('valu', 'trans', 'perm')
                if pv and c.k == 'mfma' and (p.w & c.r): need = max(need, 2)
                if p.k == 'mfma':
                    D = p.w
                    if c.k == 'mfma':
                        if (c.a | c.b) & D: need = max(need, 12)
                        if c.c is not None and (vr(c.c, 16) & D) and c.c != p.d: need = max(need, 10)
                        if (c.w & D) and c.c != p.d: need = max(need, 10)
                    elif c.k in ('valu', 'trans', 'perm', 'dsr', 'dsw', 'vmem') and (touched & D): need = max(need, 12)
                    if p.c is not None and cv and (c.w & vr(p.c, 16)): need = max(need, 7)
                if p.k == 'trans' and c.k in ('valu', 'perm') and (p.w & c.r): need = max(need, 1)
                if pv and c.k == 'perm' and (p.w & c.r): need = max(need, 2)
                if pv and c.t.startswith("v_readfirstlane") and (p.w & c.r): need = max(need, 1)
                if pv and any(x[0] == 's' for x in p.w):
                    sw = set(x for x in p.w if x[0] == 's')
                    if c.k == 'vmem' and (sw & c.r): need = max(need, 5)
                    if cv and (sw & c.r): need = max(need, 2)
                if p.store4 and cv and (c.w & p.store4): need = max(need, 2)
                if p.store4 and (c.w & p.store4): need = max(need, 1)
                if p.k == 'salu' and ('m0', 0) in p.w and c.ldsdma: need = max(need, 1)
                if dist < need:
                    errs.append("%s: [%d] %s  after [%d] %s : dist %d < %d" % (name, i, c.t, j, p.t, dist, need))
                dist += p.ws
            j -= 1
    return errs

def text(seq):
    out = []
    for x in seq:
        if x.k == 'label' and not x.t.startswith(";"): out.append(x.t)
        else: out.append("    " + x.t)
    return "\n".join(out) + "\n"
```

```python
import sys
from asmlib import *

NAME = "standalone__gqa_softmax__near_ridge"
AK = [4, 5, 6, 7]; AV = [8, 9]; L = [10, 11]; VQO = 12
MREF = 16; Q = 32; O = 64; S = [128, 144]; P = 160; TMP = 168; KF = 176; VF = 208
FLAG = 131072
GRAY = [0, 1, 3, 2]
def slot(u): return 2 * GRAY[(u >> 1) & 3] + (u & 1)
def vslot(t): return slot(t + 1)
def kslot(t): return slot(t - 1)

OPT = dict(prof=False, ntq="", ntkv="", nto="", near=2, far=True)

def vread(j, rd, base):
    ks, blk = j >> 2, j & 3
    return ds_readtr(VF + 4 * j + 2 * rd, AV[blk & 1], base + (blk >> 1) * 4096 + (2 * ks + rd) * 1024)
def kread(kk, base, dst=KF):
    return ds_read128(dst + 4 * kk, AK[kk & 3], base + (kk >> 2) * 4096)
def pv(j):
    ks, blk = j >> 2, j & 3
    return mfma(O + 16 * blk, VF + 4 * j, P + 4 * ks, O + 16 * blk)
def qk(kk, sbuf, src=KF):
    return mfma(sbuf, src + 4 * kk, Q + 4 * kk, MREF if kk == 0 else sbuf)
def ex(sb, i): return v_exp(sb + i, sb + i)
def ad(sb, i): return v_add(L[i & 1], L[i & 1], sb + i)
def cv(sb, j): return v_cvtpk(P + j, sb + 2 * j, sb + 2 * j + 1)

def stamp(i, real=False):
    if not OPT['prof']: return []
    return [I("%s s[%d:%d]" % ("s_memrealtime" if real else "s_memtime", 44 + 2 * i, 45 + 2 * i), 'smem', sr(44 + 2 * i, 2), set())]
def dump():
    if not OPT['prof']: return []
    r = [label("L_dump")]
    r += [wait(vm=0)] + stamp(22) + stamp(23, True)
    r.append(I("s_load_dwordx2 s[92:93], s[0:1], 40", 'smem', sr(92, 2), sr(0, 2)))
    r.append(salu("s_mov_b32 s94, 0x100000", sr(94)))
    r.append(salu("s_mov_b32 s95, 0x20000", sr(95)))
    r.append(v_mov(20, "0"))
    r.append(valu("v_lshlrev_b32 v21, 2, v0", vr(21), vr(0)))
    r.append(salu("s_lshl_b32 s96, s2, 11", sr(96), sr(2)))
    r.append(wait(lgkm=0))
    r.append(salu("s_and_b32 s93, s93, 0xffff", sr(93), sr(93)))
    for i in range(24):
        r.append(valu("v_writelane_b32 v20, s%d, %d" % (44 + 2 * i, i), vr(20), sr(44 + 2 * i) | vr(20)))
    r.append(I("buffer_store_dword v20, v21, s[92:95], s96 offen", 'vmem', set(), vr(20) | vr(21) | sr(92, 4) | sr(96)))
    return r
def END(): return "L_dump" if OPT['prof'] else "L_end"
def vx(reg): return valu("v_xor_b32 v%d, s32, v%d" % (reg, reg), vr(reg), vr(reg) | sr(32))

def interval(par, mem, extra):
    cur, prv = S[par], S[par ^ 1]
    reads = [vread(j, rd, mem * 8192) for j in range(8) for rd in range(2)] + [kread(kk, mem * 8192) for kk in range(8)]
    out = []
    ri = 0
    for g in range(16):
        if g == 0: out.append(wait(lgkm=8))
        if g == 8: out.append(wait(lgkm=12))
        out.append(pv(g) if g < 8 else qk(g - 8, prv))
        if g == 0: out.append(barrier())
        nr = 1 if g % 2 == 0 else 2
        for _ in range(nr):
            out.append(reads[ri]); ri += 1
        out.append(ex(cur, g - 2) if g >= 2 else ex(prv, 14 + g))
        out.append(ad(cur, g - 3) if g >= 3 else ad(prv, 13 + g))
        if g % 2 == 0:
            out.append(cv(cur, (g - 4) // 2) if g >= 4 else cv(prv, 6 + g // 2))
        out += extra.get(g, [])
    return out

def build():
    ntq, ntkv, nto = OPT['ntq'], OPT['ntkv'], OPT['nto']
    head = []
    A = head.append
    head.extend(stamp(0) + stamp(1, True))
    A(I("s_load_dwordx2 s[8:9], s[0:1], 0", 'smem', sr(8, 2), sr(0, 2)))
    A(I("s_load_dwordx2 s[12:13], s[0:1], 8", 'smem', sr(12, 2), sr(0, 2)))
    A(I("s_load_dwordx2 s[16:17], s[0:1], 16", 'smem', sr(16, 2), sr(0, 2)))
    A(I("s_load_dwordx2 s[20:21], s[0:1], 24", 'smem', sr(20, 2), sr(0, 2)))
    A(salu("s_cmp_ge_u32 s2, 256", r=sr(2)))
    A(salu("s_cbranch_scc1 L_end"))
    A(valu("v_readfirstlane_b32 s3, v0", sr(3), vr(0)))
    A(valu("v_and_b32 v1, 63, v0", vr(1), vr(0)))
    A(salu("s_and_b32 s35, s2, 7", sr(35), sr(2)))
    A(salu("s_lshr_b32 s36, s2, 5", sr(36), sr(2)))
    A(salu("s_lshl_b32 s36, s36, 3", sr(36), sr(36)))
    A(salu("s_add_u32 s35, s35, s36", sr(35), sr(35) | sr(36)))
    A(salu("s_bfe_u32 s37, s2, 0x20003", sr(37), sr(2)))
    A(salu("s_lshl_b32 s29, s35, 17", sr(29), sr(35)))
    A(salu("s_lshl_b32 s28, s37, 15", sr(28), sr(37)))
    A(salu("s_add_u32 s28, s28, s29", sr(28), sr(28) | sr(29)))
    A(salu("s_lshr_b32 s3, s3, 6", sr(3), sr(3)))
    A(salu("s_mov_b32 s30, 0", sr(30)))
    for b in (10, 14, 18, 22):
        A(salu("s_mov_b32 s%d, 0x800000" % b, sr(b)))
        A(salu("s_mov_b32 s%d, 0x20000" % (b + 1), sr(b + 1)))
    A(salu("s_cmp_ge_u32 s3, 4", r=sr(3)))
    A(salu("s_cbranch_scc1 L_loader"))

    c1 = []
    A = c1.append
    A(valu("v_and_b32 v2, 31, v1", vr(2), vr(1)))
    A(valu("v_lshrrev_b32 v3, 5, v1", vr(3), vr(1)))
    A(valu("v_lshlrev_b32 v12, 8, v2", vr(12), vr(2)))
    A(valu("v_lshl_or_b32 v12, v3, 4, v12", vr(12), vr(3) | vr(12)))
    A(salu("s_lshl_b32 s35, s3, 13", sr(35), sr(3)))
    A(salu("s_add_u32 s35, s35, s28", sr(35), sr(35) | sr(28)))
    for i in range(16): A(v_mov(MREF + i, "0"))
    A(wait(lgkm=0))
    A(salu("s_and_b32 s9, s9, 0xffff", sr(9), sr(9)))
    A(label("L_top_c"))
    for kk in range(8):
        A(I("buffer_load_dwordx4 %s, v12, s[8:11], s35 offen offset:%d%s" % (vt(Q + 4 * kk, 4), 32 * kk, ntq), 'vmem', vr(Q + 4 * kk, 4), vr(12) | sr(8, 4) | sr(35)))
    A(salu("s_branch L_c2"))

    pro = [label("L_c2")]
    A = pro.append
    A(salu("s_and_b32 s13, s13, 0xffff", sr(13), sr(13)))
    A(salu("s_and_b32 s21, s21, 0xffff", sr(21), sr(21)))
    A(salu("s_mov_b32 s42, 0x35800000", sr(42)))
    A(salu("s_mov_b32 s43, 0x49800000", sr(43)))
    A(valu("v_lshrrev_b32 v13, 3, v2", vr(13), vr(2)))
    A(valu("v_lshlrev_b32 v13, 10, v13", vr(13), vr(13)))
    A(valu("v_and_b32 v14, 7, v2", vr(14), vr(2)))
    A(valu("v_lshl_or_b32 v13, v14, 7, v13", vr(13), vr(14) | vr(13)))
    A(valu("v_bfe_u32 v14, v2, 1, 3", vr(14), vr(2)))
    A(valu("v_xor_b32 v14, v14, v3", vr(14), vr(14) | vr(3)))
    for kq in range(4):
        A(valu("v_xor_b32 v15, %d, v14" % (2 * kq), vr(15), vr(14)))
        A(valu("v_lshl_or_b32 v%d, v15, 4, v13" % AK[kq], vr(AK[kq]), vr(15) | vr(13)))
    A(valu("v_bfe_u32 v13, v1, 2, 2", vr(13), vr(1)))
    A(valu("v_lshl_or_b32 v13, v3, 2, v13", vr(13), vr(3) | vr(13)))
    A(valu("v_bfe_u32 v14, v13, 1, 1", vr(14), vr(13)))
    A(valu("v_lshlrev_b32 v13, 7, v13", vr(13), vr(13)))
    A(valu("v_bfe_u32 v15, v1, 4, 1", vr(15), vr(1)))
    A(valu("v_lshl_or_b32 v13, v15, 5, v13", vr(13), vr(15) | vr(13)))
    A(valu("v_and_b32 v15, 3, v1", vr(15), vr(1)))
    A(valu("v_lshl_or_b32 v13, v15, 3, v13", vr(13), vr(15) | vr(13)))
    A(valu("v_or_b32 v13, 0x10000, v13", vr(13), vr(13)))
    A(valu("v_lshl_or_b32 v%d, v14, 6, v13" % AV[0], vr(AV[0]), vr(14) | vr(13)))
    A(valu("v_xor_b32 v%d, 64, v%d" % (AV[1], AV[0]), vr(AV[1]), vr(AV[0])))
    for i in range(64): A(v_mov(O + i, "0"))
    A(v_mov(L[0], "0")); A(v_mov(L[1], "0"))
    A(salu("s_mov_b32 s40, 0x3e0293ee", sr(40)))
    A(salu("s_mov_b32 s41, 0x3e0293ee", sr(41)))
    A(salu("s_mov_b32 s32, 0x4000", sr(32)))
    A(salu("s_mov_b32 s31, 6", sr(31)))
    for kk in range(8):
        A(wait(vm=7 - kk))
        for i in range(4):
            x = Q + 4 * kk + i
            t = TMP + 2 * i
            A(valu("v_lshlrev_b32 v%d, 16, v%d" % (t, x), vr(t), vr(x)))
            A(valu("v_and_b32 v%d, 0xffff0000, v%d" % (t + 1, x), vr(t + 1), vr(x)))
        for i in range(4):
            t = TMP + 2 * i
            A(valu("v_pk_mul_f32 %s, %s, s[40:41]" % (vt(t, 2), vt(t, 2)), vr(t, 2), vr(t, 2) | sr(40, 2)))
        for i in range(4):
            x = Q + 4 * kk + i
            t = TMP + 2 * i
            A(v_cvtpk(x, t, t + 1))
    pro.extend(stamp(2))
    A(barrier())
    pro.extend(stamp(3) + stamp(11, True))
    for kk in range(8): A(kread(kk, kslot(0) * 8192))
    for kk in range(8): A(kread(kk, kslot(1) * 8192, VF))
    A(wait(lgkm=8))
    for kk in range(8): A(qk(kk, S[0]))
    A(barrier())
    pro.extend(stamp(4))
    A(wait(lgkm=0))
    vb = vslot(0) * 8192
    val = []
    for i in range(14):
        val.append(ex(S[0], i))
        if i >= 1: val.append(ad(S[0], i - 1))
        if i >= 2 and i % 2 == 0: val.append(cv(S[0], (i - 2) // 2))
    vi = 0
    for j in range(8):
        A(qk(j, S[1], VF))
        A(vread(j, 0, vb)); A(vread(j, 1, vb))
        if j >= 3:
            for _ in range(4):
                A(val[vi]); vi += 1
    kb = kslot(2) * 8192
    for kk in range(8):
        A(kread(kk, kb))
        for _ in range(2):
            if vi < len(val): A(val[vi]); vi += 1
    while vi < len(val): A(val[vi]); vi += 1
    A(valu("v_xor_b32 v%d, 0x4000, v%d" % (AV[0], AV[0]), vr(AV[0]), vr(AV[0])))
    A(valu("v_xor_b32 v%d, 0x4000, v%d" % (AV[1], AV[1]), vr(AV[1]), vr(AV[1])))
    pro.extend(stamp(5) + stamp(9, True))

    loop = [label("L_loop")]
    e1 = {2: [vx(AK[0])], 4: [vx(AK[1])], 6: [vx(AK[2])], 8: [vx(AK[3])],
          10: [salu("s_xor_b32 s32, s32, 0xc000", sr(32), sr(32))]}
    e2 = {12: [vx(AV[0])], 14: [vx(AV[1])], 13: [salu("s_sub_u32 s31, s31, 1", sr(31), sr(31))]}
    loop += interval(1, 0, e1)
    loop += interval(0, 1, e2)
    loop.append(salu("s_cbranch_scc0 L_loop"))

    tail = []
    A = tail.append
    cur, prv = S[1], S[0]
    vb = vslot(15) * 8192
    val = [ex(prv, 14), ad(prv, 13), cv(prv, 6), ex(prv, 15), ad(prv, 14)]
    val2 = []
    for i in range(16):
        val2.append(ex(cur, i))
        if i >= 1: val2.append(ad(cur, i - 1))
    val2.append(ad(cur, 15))
    tail.extend(stamp(6) + stamp(10, True))
    A(wait(lgkm=8))
    A(pv(0)); A(barrier()); A(vread(0, 0, vb)); A(vread(0, 1, vb)); A(val[0]); A(val[1]); A(val[2])
    A(pv(1)); A(vread(1, 0, vb)); A(vread(1, 1, vb)); A(val[3]); A(val[4])
    A(pv(2)); A(vread(2, 0, vb)); A(vread(2, 1, vb)); A(ad(prv, 15)); A(cv(prv, 7)); A(val2[0])
    vi = 1
    ncv = 0
    def more(n):
        nonlocal vi
        for _ in range(n):
            if vi < len(val2): A(val2[vi]); vi += 1
    for j in range(3, 8):
        A(pv(j)); A(vread(j, 0, vb)); A(vread(j, 1, vb)); more(3)
    done_exp = lambda: sum(1 for x in val2[:vi] if x.k == 'trans')
    while vi < len(val2):
        more(2)
        while ncv < 4 and done_exp() >= 2 * ncv + 3:
            A(cv(cur, ncv)); ncv += 1
    while ncv < 8:
        A(cv(cur, ncv)); ncv += 1
    tail.extend(stamp(7))
    A(v_add(L[0], L[0], L[1]))
    A(wait(lgkm=0))
    A(v_mov(L[1], L[0]))
    A(pv(0)); A(pv(4))
    A(swap32(L[0], L[1]))
    A(v_add(L[0], L[0], L[1]))
    A(v_rcp(13, L[0]))
    A(pv(1)); A(pv(5))
    WA = 4; RA = [5, 6, 7, 8]; GA = 9
    A(valu("v_and_b32 v15, 15, v2", vr(15), vr(2)))
    A(valu("v_xor_b32 v15, v15, v3", vr(15), vr(15) | vr(3)))
    A(salu("s_lshl_b32 s36, s3, 13", sr(36), sr(3)))
    A(valu("v_lshlrev_b32 v%d, 8, v2" % WA, vr(WA), vr(2)))
    A(valu("v_lshl_or_b32 v%d, v15, 4, v%d" % (WA, WA), vr(WA), vr(15) | vr(WA)))
    A(valu("v_or_b32 v%d, s36, v%d" % (WA, WA), vr(WA), vr(WA) | sr(36)))
    def epi(blk):
        o = O + 16 * blk
        r = []
        for i in range(8):
            r.append(valu("v_pk_mul_f32 %s, %s, %s op_sel_hi:[1,0]" % (vt(o + 2 * i, 2), vt(o + 2 * i, 2), vt(14, 2)), vr(o + 2 * i, 2), vr(o + 2 * i, 2) | vr(14)))
        for n in range(8): r.append(v_cvtpk(o + n, o + 2 * n, o + 2 * n + 1))
        for hh in range(2):
            r.append(valu("v_xor_b32 v%d, %d, v%d" % (o + 8 + hh, (4 * blk + 2 * hh) << 4, WA), vr(o + 8 + hh), vr(WA)))
        r.append(swap32(o + 0, o + 2)); r.append(swap32(o + 1, o + 3))
        r.append(swap32(o + 4, o + 6)); r.append(swap32(o + 5, o + 7))
        for hh in range(2):
            r.append(I("ds_write_b128 v%d, %s" % (o + 8 + hh, vt(o + 4 * hh, 4)), 'dsw', set(), vr(o + 4 * hh, 4) | vr(o + 8 + hh)))
        return r
    A(v_mov(14, 13))
    A(valu("v_cmp_nge_f32 s[36:37], v%d, s42" % L[0], sr(36, 2), vr(L[0]) | sr(42)))
    A(valu("v_cmp_nle_f32 s[38:39], v%d, s43" % L[0], sr(38, 2), vr(L[0]) | sr(43)))
    A(pv(2)); A(pv(6))
    e0 = epi(0)
    tail += e0[:8]
    A(pv(3)); A(pv(7))
    tail += e0[8:]
    A(valu("v_lshrrev_b32 v13, 4, v1", vr(13), vr(1)))
    A(valu("v_and_b32 v15, 15, v1", vr(15), vr(1)))
    A(valu("v_xor_b32 v15, v15, v13", vr(15), vr(15) | vr(13)))
    A(valu("v_lshlrev_b32 v13, 8, v13", vr(13), vr(13)))
    A(valu("v_lshl_or_b32 v13, v15, 4, v13", vr(13), vr(15) | vr(13)))
    A(salu("s_lshl_b32 s33, s3, 13", sr(33), sr(3)))
    A(valu("v_or_b32 v%d, s33, v13" % RA[0], vr(RA[0]), vr(13) | sr(33)))
    for a in range(1, 4): A(valu("v_xor_b32 v%d, %d, v%d" % (RA[a], 64 * a, RA[0]), vr(RA[a]), vr(RA[0])))
    A(valu("v_lshlrev_b32 v%d, 4, v1" % GA, vr(GA), vr(1)))
    A(salu("s_add_u32 s34, s35, 4096", sr(34), sr(35)))
    tail += epi(1)
    tail += epi(2)
    tail += epi(3)
    A(wait(lgkm=0))
    for i in range(8): A(ds_read128(KF + 4 * i, RA[i & 3], 1024 * i))
    for i in range(8):
        A(wait(lgkm=7 - i))
        A(I("buffer_store_dwordx4 %s, v%d, s[20:23], s%d offen offset:%d%s" % (vt(KF + 4 * i, 4), GA, 35 if i < 4 else 34, 1024 * (i & 3), nto), 'vmem',
            set(), vr(KF + 4 * i, 4) | vr(GA) | sr(20, 4) | sr(34, 2), store4=vr(KF + 4 * i, 4)))
    tail.extend(stamp(8))
    A(salu("s_cmp_lg_u32 s30, 0", r=sr(30)))
    A(salu("s_cbranch_scc1 " + END()))
    A(salu("s_or_b64 s[36:37], s[36:37], s[38:39]", sr(36, 2), sr(36, 4)))
    A(salu("s_cbranch_scc0 L_ok"))
    A(v_mov(13, "%d" % FLAG)); A(v_mov(14, "1"))
    A(I("ds_write_b32 v13, v14", 'dsw', set(), vr(13) | vr(14)))
    A(wait(lgkm=0))
    A(label("L_ok"))
    A(barrier())
    A(v_mov(13, "%d" % FLAG))
    A(I("ds_read_b32 v14, v13", 'dsr', vr(14), vr(13)))
    A(wait(lgkm=0))
    A(valu("v_readfirstlane_b32 s36, v14", sr(36), vr(14)))
    A(nop(3))
    A(salu("s_cmp_eq_u32 s36, 0", r=sr(36)))
    A(salu("s_cbranch_scc1 " + END()))
    A(wait(vm=0))
    A(v_mov(13, "0xff800000"))
    A(salu("s_mov_b32 s31, s29", sr(31), sr(29)))
    A(salu("s_add_u32 s36, s29, 0x20000", sr(36), sr(29)))
    A(label("L_max"))
    for kk in range(8):
        A(I("buffer_load_dwordx4 %s, v12, s[12:15], s31 offen offset:%d" % (vt(KF + 4 * kk, 4), 32 * kk), 'vmem', vr(KF + 4 * kk, 4), vr(12) | sr(12, 4) | sr(31)))
    A(wait(vm=0))
    for kk in range(8): A(mfma(S[0], KF + 4 * kk, Q + 4 * kk, None if kk == 0 else S[0]))
    A(nop(7)); A(nop(7))
    for i in range(8):
        A(valu("v_max3_f32 v13, v13, v%d, v%d" % (S[0] + 2 * i, S[0] + 2 * i + 1), vr(13), vr(13) | vr(S[0] + 2 * i, 2)))
    A(salu("s_add_u32 s31, s31, 0x2000", sr(31), sr(31)))
    A(salu("s_cmp_lt_u32 s31, s36", r=sr(31) | sr(36)))
    A(salu("s_cbranch_scc1 L_max"))
    A(v_mov(14, 13))
    A(nop(1))
    A(swap32(13, 14))
    A(valu("v_max_f32 v13, v13, v14", vr(13), vr(13) | vr(14)))
    for i in range(16): A(valu("v_sub_f32 v%d, 0, v13" % (MREF + i), vr(MREF + i), vr(13)))
    A(salu("s_mov_b32 s30, 1", sr(30)))
    A(salu("s_branch L_top_c"))
    tail.extend(dump())
    A(label("L_end"))
    A(salu("s_endpgm"))

    ld = [label("L_loader")]
    A = ld.append
    A(salu("s_sub_u32 s3, s3, 4", sr(3), sr(3)))
    A(salu("s_lshl_b32 s33, s3, 10", sr(33), sr(3)))
    A(valu("v_lshrrev_b32 v2, 3, v1", vr(2), vr(1)))
    A(valu("v_and_b32 v3, 7, v1", vr(3), vr(1)))
    A(salu("s_lshl_b32 s36, s3, 11", sr(36), sr(3)))
    A(valu("v_lshlrev_b32 v4, 8, v2", vr(4), vr(2)))
    A(valu("v_add_u32 v4, s36, v4", vr(4), vr(4) | sr(36)))
    A(salu("s_and_b32 s36, s3, 1", sr(36), sr(3)))
    A(salu("s_lshl_b32 s36, s36, 2", sr(36), sr(36)))
    A(valu("v_lshrrev_b32 v5, 1, v2", vr(5), vr(2)))
    A(valu("v_or_b32 v6, s36, v5", vr(6), vr(5) | sr(36)))
    A(valu("v_xor_b32 v6, v6, v3", vr(6), vr(6) | vr(3)))
    A(valu("v_lshl_or_b32 v10, v6, 4, v4", vr(10), vr(6) | vr(4)))
    A(valu("v_and_b32 v5, 1, v5", vr(5), vr(5)))
    A(valu("v_lshlrev_b32 v5, 2, v5", vr(5), vr(5)))
    A(valu("v_xor_b32 v6, v5, v3", vr(6), vr(5) | vr(3)))
    A(valu("v_lshl_or_b32 v11, v6, 4, v4", vr(11), vr(6) | vr(4)))
    A(v_mov(13, "%d" % FLAG)); A(v_mov(14, "0"))
    tbl = sum(slot(u) << (4 * u) for u in range(8))
    A(I("ds_write_b32 v13, v14", 'dsw', set(), vr(13) | vr(14)))
    A(salu("s_mov_b32 s39, 0x%x" % tbl, sr(39)))
    A(salu("s_getpc_b64 s[4:5]", sr(4, 2)))
    A(label("L_pc"))
    A(salu("s_add_u32 s6, s4, L_subV-L_pc", sr(6), sr(4)))
    A(salu("s_addc_u32 s7, s5, 0", sr(7), sr(5)))
    A(salu("s_add_u32 s4, s4, L_subKV-L_pc", sr(4), sr(4)))
    A(salu("s_addc_u32 s5, s5, 0", sr(5), sr(5)))
    A(wait(lgkm=0))
    A(salu("s_and_b32 s13, s13, 0xffff", sr(13), sr(13)))
    A(salu("s_and_b32 s17, s17, 0xffff", sr(17), sr(17)))
    A(label("L_top_l"))
    ld.extend(stamp(2))
    def dmaK(m0txt, soff):
        return [salu(m0txt(0), {('m0', 0)}, sr(33) | sr(38)),
                nop(0),
                I("buffer_load_dwordx4 v10, s[12:15], s%d offen%s lds" % (soff, ntkv), 'vmem', set(), vr(10) | sr(12, 4) | sr(soff), ldsdma=True),
                salu(m0txt(4096 - 128), {('m0', 0)}, sr(33) | sr(38)),
                nop(0),
                I("buffer_load_dwordx4 v10, s[12:15], s%d offen offset:128%s lds" % (soff, ntkv), 'vmem', set(), vr(10) | sr(12, 4) | sr(soff), ldsdma=True)]
    ld += dmaK(lambda o: "s_add_u32 m0, s33, %d" % (kslot(0) * 8192 + o), 29)
    A(salu("s_add_u32 s34, s29, 8192", sr(34), sr(29)))
    ld += dmaK(lambda o: "s_add_u32 m0, s33, %d" % (kslot(1) * 8192 + o), 34)
    A(salu("s_add_u32 s38, s33, %d" % (slot(1) * 8192), sr(38), sr(33)))
    A(salu("s_mov_b32 s34, s29", sr(34), sr(29)))
    A(salu("s_add_u32 s35, s29, 16384", sr(35), sr(29)))
    A(salu("s_mov_b32 s36, 0x%x" % ((3 << 16) | 8), sr(36)))
    A(salu("s_cmp_eq_u32 s3, s37", r=sr(3) | sr(37)))
    A(salu("s_cbranch_scc1 L_far" if OPT['far'] else "s_nop 0"))
    def role(name, cum):
        r = [label(name)] if name else []
        issued = 0
        cnt = [2, 2]
        def issue(upto):
            nonlocal issued
            while issued < min(upto, 16):
                issued += 1
                r.append(salu("s_swappc_b64 s[40:41], s[%d:%d]" % ((4, 5) if issued <= 14 else (6, 7)), sr(40, 2), sr(4, 4)))
                cnt.append(4 if issued <= 14 else 2)
        issue(cum(-2))
        r.extend(stamp(3))
        for t in range(-1, 16):
            allowed = sum(cnt[t + 3:])
            r.append(wait(vm=allowed, lgkm=0 if t == -1 else None))
            r.extend(stamp(5 + t))
            r.append(barrier())
            issue(cum(t))
        return r
    near = OPT['near']
    ld += role(None, lambda i: max(1, i + 1 + near))
    A(salu("s_branch L_lend"))
    ld += role("L_far", lambda i: min(2 * i + 5, i + 7))
    A(label("L_lend"))
    A(salu("s_cmp_lg_u32 s30, 0", r=sr(30)))
    A(salu("s_cbranch_scc1 " + END()))
    A(barrier())
    A(I("ds_read_b32 v14, v13", 'dsr', vr(14), vr(13)))
    A(wait(lgkm=0))
    A(valu("v_readfirstlane_b32 s36, v14", sr(36), vr(14)))
    A(nop(3))
    A(salu("s_cmp_eq_u32 s36, 0", r=sr(36)))
    A(salu("s_cbranch_scc1 " + END()))
    A(salu("s_mov_b32 s30, 1", sr(30)))
    A(salu("s_branch L_top_l"))
    sub = [label("L_subKV")]
    A = sub.append
    A(salu("s_mov_b32 m0, s38", {('m0', 0)}, sr(38)))
    A(nop(0))
    A(I("buffer_load_dwordx4 v10, s[12:15], s35 offen%s lds" % ntkv, 'vmem', set(), vr(10) | sr(12, 4) | sr(35), ldsdma=True))
    A(salu("s_add_u32 m0, s38, %d" % (4096 - 128), {('m0', 0)}, sr(38)))
    A(nop(0))
    A(I("buffer_load_dwordx4 v10, s[12:15], s35 offen offset:128%s lds" % ntkv, 'vmem', set(), vr(10) | sr(12, 4) | sr(35), ldsdma=True))
    A(label("L_subV"))
    A(salu("s_add_u32 m0, s38, 65536", {('m0', 0)}, sr(38)))
    A(salu("s_add_u32 s35, s35, 8192", sr(35), sr(35)))
    A(I("buffer_load_dwordx4 v11, s[16:19], s34 offen%s lds" % ntkv, 'vmem', set(), vr(11) | sr(16, 4) | sr(34), ldsdma=True))
    A(salu("s_add_u32 m0, s38, %d" % (65536 + 4096 - 128), {('m0', 0)}, sr(38)))
    A(salu("s_bfe_u32 s38, s39, s36", sr(38), sr(39) | sr(36)))
    A(I("buffer_load_dwordx4 v11, s[16:19], s34 offen offset:128%s lds" % ntkv, 'vmem', set(), vr(11) | sr(16, 4) | sr(34), ldsdma=True))
    A(salu("s_lshl_b32 s38, s38, 13", sr(38), sr(38)))
    A(salu("s_add_u32 s38, s38, s33", sr(38), sr(38) | sr(33)))
    A(salu("s_add_u32 s34, s34, 8192", sr(34), sr(34)))
    A(salu("s_add_u32 s36, s36, 4", sr(36), sr(36)))
    A(salu("s_and_b32 s36, s36, 0x3001c", sr(36), sr(36)))
    A(salu("s_setpc_b64 s[40:41]", r=sr(40, 2)))

    errs = check(head + c1 + pro + loop + loop + tail + c1[24:] + pro, "compute") + check(head + ld + sub, "loader")
    for e in errs: print("HAZARD", e)
    hdr = open("cdna_kernels/%s.s.ref" % NAME).read().split("; @launch")[0]
    s = hdr + "; @launch grid=(256,1,1) block=(512,1,1) lds=131584\n"
    s += '.amdgcn_target "amdgcn-amd-amdhsa--gfx950"\n.text\n.globl %s_kernel\n.p2align 8\n.type %s_kernel,@function\n%s_kernel:\n' % (NAME, NAME, NAME)
    s += text(head + c1 + ld + sub + pro + loop + tail)
    s += """.section .rodata,"a"
.p2align 6
.amdhsa_kernel %s_kernel
  .amdhsa_next_free_vgpr 256
  .amdhsa_next_free_sgpr 102
  .amdhsa_accum_offset 256
  .amdhsa_group_segment_fixed_size 0
  .amdhsa_kernarg_size 48
  .amdhsa_user_sgpr_count 2
  .amdhsa_user_sgpr_kernarg_segment_ptr 1
  .amdhsa_system_sgpr_workgroup_id_x 1
.end_amdhsa_kernel
""" % NAME
    return s, errs

if __name__ == "__main__":
    out = sys.argv[1] if len(sys.argv) > 1 else "cdna_kernels/%s.s" % NAME
    for a in sys.argv[2:]:
        k, v = a.split("=")
        if k in ("ntq", "ntkv", "nto"): OPT[k] = (" " + v.replace("_", " ")) if v else ""
        elif k in ("prof", "far"): OPT[k] = bool(int(v))
        else: OPT[k] = int(v)
    s, errs = build()
    open(out, "w").write(s)
    print("written", out, len(s), "errs", len(errs))
```
